```python
import torch

def _softmax(x, axis=-1):
    return torch.softmax(x, dim=axis)
def _gelu(x):
    return torch.nn.functional.gelu(x, approximate="tanh")
def _silu(x):
    return torch.nn.functional.silu(x)
def _sigmoid(x):
    return torch.sigmoid(x)
def _layernorm(x, axis=-1, eps=1e-5):
    m = x.mean(dim=axis, keepdim=True)
    v = x.var(dim=axis, keepdim=True, unbiased=False)
    return (x - m) / torch.sqrt(v + eps)
def _scatter_add(tgt, idx, src, axis=0):
    return tgt.clone().index_add_(axis, idx, src)
def _segment_sum(src, seg, n):
    out = torch.zeros((n,) + src.shape[1:], dtype=src.dtype)
    return out.index_add_(0, seg, src)
def _pad(x, pw):
    flat = tuple(v for pair in reversed(pw) for v in pair)
    return torch.nn.functional.pad(x, flat)

kernel_name = 'concat_heads__gqa_block_cached__sliding_block_cached__decode'

def setup_inputs():

    _w = (lambda a: (lambda t: t.to(torch.bfloat16) if t.is_floating_point() else t)(torch.as_tensor(a)))
    def _A_setup():
        B, Sq, D = 2, 1, 448
        Hq, Hkv, Sk, Dh = 16, 8, 8192, 256
        assert Hq % Hkv == 0, (Hq, Hkv)
        return {
            "x": _w((lambda *s: torch.randn(*s, dtype=torch.bfloat16) * 0.8)(B, Sq, D)),
            "k_cache": _w((lambda *s: torch.randn(*s, dtype=torch.bfloat16) * 1.6)(B, Hkv, Sk, Dh)),
            "v_cache": _w((lambda *s: torch.randn(*s, dtype=torch.bfloat16) * 0.2)(B, Hkv, Sk, Dh)),
            "wq": _w((lambda *s: torch.randn(*s, dtype=torch.bfloat16) * 1.6)(D, Hq * Dh) * (D ** -0.5)),
            "wo": _w((lambda *s: torch.randn(*s, dtype=torch.bfloat16) * 0.2)(Hq * Dh, D) * ((Hq * Dh) ** -0.5)),
        }
    _A_in = _A_setup()

    def _B_setup():
        B, Sq, D = 2, 1, 448
        Hq, Hkv, Sk, Dh = 16, 8, 8192, 256
        assert Hq % Hkv == 0, (Hq, Hkv)
        return {
            "x": _w((lambda *s: torch.randn(*s, dtype=torch.bfloat16) * 0.8)(B, Sq, D)),
            "k_cache": _w((lambda *s: torch.randn(*s, dtype=torch.bfloat16) * 1.6)(B, Hkv, Sk, Dh)),
            "v_cache": _w((lambda *s: torch.randn(*s, dtype=torch.bfloat16) * 0.2)(B, Hkv, Sk, Dh)),
            "wq": _w((lambda *s: torch.randn(*s, dtype=torch.bfloat16) * 1.6)(D, Hq * Dh) * (D ** -0.5)),
            "wo": _w((lambda *s: torch.randn(*s, dtype=torch.bfloat16) * 0.2)(Hq * Dh, D) * ((Hq * Dh) ** -0.5)),
        }
    _B_in = _B_setup()

    return {
        "A_x": _A_in["x"],
        "A_k_cache": _A_in["k_cache"],
        "A_v_cache": _A_in["v_cache"],
        "A_wq": _A_in["wq"],
        "A_wo": _A_in["wo"],
        "B_x": _B_in["x"],
        "B_k_cache": _B_in["k_cache"],
        "B_v_cache": _B_in["v_cache"],
        "B_wq": _B_in["wq"],
        "B_wo": _B_in["wo"],
    }

def reference(A_x, A_k_cache, A_v_cache, A_wq, A_wo, B_x, B_k_cache, B_v_cache, B_wq, B_wo):
    def _A_ref(x, k_cache, v_cache, wq, wo):
        B, Sq, D = x.shape
        Hq, Dh = 16, 256
        Hkv = k_cache.shape[1]
        rep = Hq // Hkv
        q = (lambda x, *d: x.permute(*d))((x @ wq).reshape(B, Sq, Hq, Dh), 0, 2, 1, 3)
        k = (lambda x, n, axis: torch.repeat_interleave(x, n, dim=axis))(k_cache, rep, axis=1)
        v = (lambda x, n, axis: torch.repeat_interleave(x, n, dim=axis))(v_cache, rep, axis=1)
        scores = torch.einsum("bhqd,bhkd->bhqk", q, k) * (Dh ** -0.5)
        p = _softmax(scores, axis=-1)
        o = torch.einsum("bhqk,bhkd->bhqd", p, v)
        return (lambda x, *d: x.permute(*d))(o, 0, 2, 1, 3).reshape(B, Sq, Hq * Dh) @ wo

    def _B_ref(x, k_cache, v_cache, wq, wo):
        B, Sq, D = x.shape
        Hq, Dh = 16, 256
        Hkv, Sk = k_cache.shape[1], k_cache.shape[2]
        W = min(4096, max(256, Sk // 4))
        rep = Hq // Hkv
        q = (lambda x, *d: x.permute(*d))((x @ wq).reshape(B, Sq, Hq, Dh), 0, 2, 1, 3)
        k = (lambda x, n, axis: torch.repeat_interleave(x, n, dim=axis))(k_cache[:, :, Sk - W:, :], rep, axis=1)
        v = (lambda x, n, axis: torch.repeat_interleave(x, n, dim=axis))(v_cache[:, :, Sk - W:, :], rep, axis=1)
        scores = torch.einsum("bhqd,bhkd->bhqk", q, k) * (Dh ** -0.5)
        p = _softmax(scores, axis=-1)
        o = torch.einsum("bhqk,bhkd->bhqd", p, v)
        return (lambda x, *d: x.permute(*d))(o, 0, 2, 1, 3).reshape(B, Sq, Hq * Dh) @ wo

    a = _A_ref(A_x, A_k_cache, A_v_cache, A_wq, A_wo)
    b = _B_ref(B_x, B_k_cache, B_v_cache, B_wq, B_wo)
    return torch.concatenate([a, b], axis=-1)
```

```python
import sys
KN = "concat_heads__gqa_block_cached__sliding_block_cached__decode_kernel"
HDR = open("concat_heads__gqa_block_cached__sliding_block_cached__decode.s.ref").read().split("; Override launch")[0]

L_QP, L_QL, L_FLAG, L_ZERO, L_OB, L_ML, L_O = 0, 2048, 4096, 4112, 4224, 4352, 8192
LDS_BYTES = 8192 + 32768
W_EPOCH, W_QM, W_H1, W_H2 = 0, 0x1000, 0x20000, 0x240000
WS_BYTES = 283119104
STAMP_OFF = 200 << 20
SPIN_MAX = 400000

def gen(stamps=False, b1=True, warm=False):
    L = []
    def A(s): L.append("    " + s)
    def LB(s): L.append(s + ":")
    def C(s): L.append("    ; " + s)
    nst = [0]
    def stamp(k):
        if stamps: A(f"s_memrealtime s[{80+2*k}:{81+2*k}]")
    sKA, sVA, sKB, sVB, sWQ, sWO, sX, sWS, sOUT = 32, 36, 40, 44, 48, 52, 56, 60, 64
    sW, sCL, sIDX, sB, sI = 3, 68, 69, 70, 71
    sTAG, sLO, sHI, sC = 72, 73, 74, 75
    sT0, sT1, sCNT = 76, 77, 78
    sOA = 4
    sOBb = 8
    sMSK = 10
    def srd(d): return f"s[{d}:{d+3}]"
    vL, vKV = 0, 1
    vQB, vQA = 8, 24
    vS = 40
    vX, vY = 60, 64
    vAB, vAA = 68, 76
    vT = 84
    vBUF = 96
    vAT = 8
    vWO = 24
    L.append(HDR.rstrip())
    L.append(f"; @launch grid=(256,1,1) block=(512,1,1) lds={LDS_BYTES}")
    L.append('.amdgcn_target "amdgcn-amd-amdhsa--gfx950"')
    L.append(".text"); L.append(f".globl {KN}"); L.append(".p2align 8"); L.append(f".type {KN},@function"); L.append(f"{KN}:")
    stamp(0)
    A("s_cmp_ge_u32 s2, 256"); A("s_cbranch_scc1 L_end")
    A("s_load_dwordx16 s[4:19], s[0:1], 0")
    A("s_load_dwordx8 s[20:27], s[0:1], 64")
    A("s_load_dwordx2 s[28:29], s[0:1], 96")
    A("v_lshrrev_b32 v1, 6, v0")
    A(f"s_and_b32 s{sCL}, s2, 7")
    A(f"v_readfirstlane_b32 s{sW}, v1")
    A("v_and_b32 v0, 63, v0")
    A(f"s_lshr_b32 s{sIDX}, s2, 3"); A(f"s_lshr_b32 s{sB}, s2, 7"); A(f"s_and_b32 s{sI}, s{sIDX}, 15")
    C("lane offsets")
    A("v_lshrrev_b32 v2, 2, v0")
    A("v_and_b32 v3, 3, v0")
    A("v_lshlrev_b32 v3, 4, v3")
    A("v_lshl_add_u32 v4, v2, 15, v3")
    A("v_lshlrev_b32 v5, 3, v2")
    A("v_lshrrev_b32 v6, 4, v0")
    A("v_and_b32 v7, 15, v0")
    A("v_lshlrev_b32 v1, 4, v7")
    A("v_lshl_add_u32 v1, v6, 11, v1")
    C("scalar offsets independent of pointers")
    A(f"s_lshl_b32 s{sT0}, s{sCL}, 10"); A(f"s_lshl_b32 s{sT1}, s{sI}, 6"); A(f"s_add_u32 s{sT0}, s{sT0}, s{sT1}")
    A(f"s_lshl_b32 s{sT1}, s{sW}, 19"); A(f"s_add_u32 s30, s{sT0}, s{sT1}")
    A(f"s_lshl_b32 s31, s{sW}, 7")
    for d, n in ((sKA, 0x4000000), (sVA, 0x4000000), (sKB, 0x4000000), (sVB, 0x4000000), (sWQ, 3670016), (sWO, 3670016), (sX, 1792), (sWS, WS_BYTES), (sOUT, 3584)):
        A(f"s_mov_b32 s{d+2}, {n}"); A(f"s_mov_b32 s{d+3}, 0x20000")
    A(f"s_cmp_eq_u32 s{sB}, 0")
    A("s_waitcnt lgkmcnt(0)")
    stamp(1)
    A(f"s_cselect_b64 s[{sX}:{sX+1}], s[4:5], s[14:15]")
    A(f"s_cselect_b64 s[{sWQ}:{sWQ+1}], s[10:11], s[20:21]")
    A(f"s_cselect_b64 s[{sWO}:{sWO+1}], s[12:13], s[22:23]")
    A(f"s_mov_b64 s[{sKB}:{sKB+1}], s[16:17]")
    A(f"s_load_dword s{sTAG}, s[28:29], {W_EPOCH}")
    A(f"s_cmp_eq_u32 s{sW}, 7"); A("s_cbranch_scc1 L_skipwq")
    A(f"buffer_load_dwordx2 v[144:145], v5, {srd(sX)}, s31 offen")
    A(f"buffer_load_dwordx2 v[146:147], v5, {srd(sX)}, s31 offen offset:896")
    for k in range(4):
        A(f"buffer_load_dwordx4 v[{128+4*k}:{131+4*k}], v4, {srd(sWQ)}, s30 offen nt")
        if k < 3: A("s_add_u32 s30, s30, 8192")
    LB("L_skipwq")
    A(f"s_mov_b64 s[{sKA}:{sKA+1}], s[6:7]"); A(f"s_mov_b64 s[{sVA}:{sVA+1}], s[8:9]")
    A(f"s_mov_b64 s[{sVB}:{sVB+1}], s[18:19]")
    A(f"s_mov_b64 s[{sWS}:{sWS+1}], s[28:29]"); A(f"s_mov_b64 s[{sOUT}:{sOUT+1}], s[24:25]")
    C("tile offsets")
    A(f"s_lshl_b32 s{sT0}, s{sB}, 3"); A(f"s_add_u32 s{sT0}, s{sT0}, s{sCL}"); A(f"s_lshl_b32 s{sT0}, s{sT0}, 22")
    A(f"s_lshl_b32 s{sT1}, s{sW}, 13"); A(f"s_add_u32 s{sT0}, s{sT0}, s{sT1}")
    A(f"s_lshl_b32 s{sT1}, s{sI}, 16"); A(f"s_add_u32 s{sOBb}, s{sT0}, s{sT1}"); A(f"s_add_u32 s{sOBb}, s{sOBb}, {6144*512}")
    A(f"s_lshl_b32 s{sT1}, s{sI}, 18"); A(f"s_add_u32 s{sOA}, s{sT0}, s{sT1}")
    for t in range(1, 4): A(f"s_add_u32 s{sOA+t}, s{sOA}, {t*65536}")
    if b1: A("s_barrier")
    def tile_loads(j, kind):
        d = (sKB if kind == "K" else sVB) if j == 0 else (sKA if kind == "K" else sVA)
        so = sOBb if j == 0 else sOA + j - 1
        for i in range(8):
            r = vBUF + 32*j + 4*i
            A(f"buffer_load_dwordx4 v[{r}:{r+3}], v{vKV}, {srd(d)}, s{so} offen offset:{i*256} nt")
    tile_loads(0, "K")
    C("constants")
    A(f"s_mov_b32 s{sLO}, 0x05040100"); A(f"s_mov_b32 s{sHI}, 0x07060302")
    A(f"s_mov_b32 s{sC}, 0x3db8aa3b")
    for t in range(8):
        pat = (0b101 << (4*(t >> 1) + (t & 1))) * 0x00010001
        A(f"s_mov_b32 s{sMSK+2*t}, {pat:#x}"); A(f"s_mov_b32 s{sMSK+2*t+1}, {pat:#x}")
    A("s_waitcnt lgkmcnt(0)")
    A(f"s_mul_i32 s{sTAG}, s{sTAG}, 1664525"); A(f"s_add_u32 s{sTAG}, s{sTAG}, 1013904223")
    A(f"s_cmp_eq_u32 s{sW}, 7"); A("s_cbranch_scc1 L_svc_init")
    C("---- q partial (waves 0..6)")
    A("v_bfe_u32 v92, v0, 2, 1"); A("v_lshlrev_b32 v92, 7, v92")
    A("v_lshl_add_u32 v92, v3, 1, v92")
    A("v_bfe_u32 v93, v0, 3, 1"); A("v_lshl_add_u32 v92, v93, 4, v92")
    A("v_bfe_u32 v93, v0, 4, 1"); A("v_lshl_add_u32 v92, v93, 3, v92")
    A("v_bfe_u32 v93, v0, 5, 1"); A("v_lshl_add_u32 v92, v93, 2, v92")
    A(f"s_lshl_b32 s{sT0}, s{sW}, 8"); A(f"v_add_u32 v92, s{sT0}, v92")
    A("s_waitcnt vmcnt(8)")
    stamp(2)
    for e in range(8):
        sel = sHI if e & 1 else sLO
        A(f"v_perm_b32 v{148+2*e}, v{132+e//2}, v{128+e//2}, s{sel}")
        A(f"v_perm_b32 v{149+2*e}, v{140+e//2}, v{136+e//2}, s{sel}")
    for b in range(2):
        for e in range(8): A(f"v_dot2_f32_bf16 v{164+8*b+e}, v{148+2*e}, v{144+2*b}, 0")
    for b in range(2):
        for e in range(8): A(f"v_dot2_f32_bf16 v{164+8*b+e}, v{149+2*e}, v{145+2*b}, v{164+8*b+e}")
    A("s_nop 2")
    R = 164
    for e in range(8): A(f"v_add_f32_dpp v{R+e}, v{R+e}, v{R+e} row_shl:4 row_mask:0xf bank_mask:0x5")
    for e in range(8): A(f"v_add_f32_dpp v{R+e}, v{R+8+e}, v{R+8+e} row_shr:4 row_mask:0xf bank_mask:0xa")
    A("s_nop 1")
    for e in range(4): A(f"v_add_f32_dpp v{R+e}, v{R+e}, v{R+e} row_ror:8 row_mask:0xf bank_mask:0x3")
    for e in range(4): A(f"v_add_f32_dpp v{R+e}, v{R+4+e}, v{R+4+e} row_ror:8 row_mask:0xf bank_mask:0xc")
    A("s_nop 1")
    for e in range(2): A(f"v_permlane16_swap_b32 v{R+e}, v{R+2+e}")
    A("s_nop 1")
    for e in range(2): A(f"v_add_f32 v{R+e}, v{R+e}, v{R+2+e}")
    A("s_nop 1")
    A(f"v_permlane32_swap_b32 v{R}, v{R+1}")
    A("s_nop 1")
    A(f"v_add_f32 v{R}, v{R}, v{R+1}")
    A(f"ds_write_b32 v92, v{R} offset:{L_QP}")
    A("s_waitcnt lgkmcnt(0)")
    A("s_barrier")
    for j in range(1, 5): tile_loads(j, "K")
    stamp(3)
    C("wait for q flag in LDS")
    A(f"v_mov_b32 v92, {L_FLAG}")
    A(f"s_mov_b32 s{sCNT}, 0")
    LB("L_qwait")
    A("ds_read_b32 v93, v92")
    A("s_waitcnt lgkmcnt(0)")
    A(f"v_readfirstlane_b32 s{sT0}, v93")
    A(f"s_cmp_eq_u32 s{sT0}, 1"); A("s_cbranch_scc1 L_qready")
    A("s_sleep 4")
    A(f"s_add_u32 s{sCNT}, s{sCNT}, 1"); A(f"s_cmp_lt_u32 s{sCNT}, {SPIN_MAX*8}"); A("s_cbranch_scc1 L_qwait")
    A("s_branch L_end")
    C("---- service wave (wave 7)")
    LB("L_svc_init")
    A("s_setprio 3")
    A("v_mov_b32 v128, 0"); A("v_mov_b32 v129, 0"); A("v_mov_b32 v130, 0"); A("v_mov_b32 v131, 0")
    A(f"v_mov_b32 v92, {L_FLAG}")
    A("ds_write_b128 v92, v[128:131]")
    A("ds_write_b128 v92, v[128:131] offset:16")
    A("v_lshlrev_b32 v93, 4, v0")
    A("s_waitcnt lgkmcnt(0)")
    A("s_barrier")
    stamp(2)
    for w in range(7): A(f"ds_read_b128 v[{128+4*w}:{131+4*w}], v93 offset:{L_QP+256*w}")
    A("v_lshrrev_b32 v94, 3, v0"); A("v_and_b32 v95, 7, v0"); A("v_lshlrev_b32 v95, 4, v95"); A("v_lshl_add_u32 v94, v94, 12, v95")
    A(f"s_lshl_b32 s{sT0}, s{sCL}, 13"); A(f"s_add_u32 s{sT0}, s{sT0}, {W_QM}")
    A(f"s_lshl_b32 s{sT1}, s{sIDX}, 7"); A(f"s_add_u32 s30, s{sT0}, s{sT1}")
    A(f"s_lshl_b32 s{sT1}, s{sB}, 12"); A(f"s_add_u32 s31, s{sT0}, s{sT1}")
    A("s_waitcnt lgkmcnt(0)")
    for w in range(1, 7):
        for k in range(4): A(f"v_add_f32 v{128+k}, v{128+k}, v{128+4*w+k}")
    A("v_cvt_pk_bf16_f32 v160, v128, v129"); A("v_cvt_pk_bf16_f32 v161, v130, v131")
    A(f"v_mov_b32 v162, s{sTAG}"); A(f"v_mov_b32 v163, s{sTAG}")
    A("s_mov_b64 exec, 0xffff")
    A(f"buffer_store_dwordx4 v[160:163], v94, {srd(sWS)}, s30 offen sc1")
    A("s_mov_b64 exec, -1")
    A(f"s_mov_b32 s{sCNT}, 0")
    LB("L_qpoll")
    for j in range(4): A(f"buffer_load_dwordx4 v[{128+4*j}:{131+4*j}], v93, {srd(sWS)}, s31 offen offset:{1024*j} sc1")
    A("s_waitcnt vmcnt(0)")
    A(f"v_cmp_ne_u32 vcc, s{sTAG}, v130"); A(f"v_cmp_ne_u32 s[26:27], s{sTAG}, v134"); A("s_or_b64 vcc, vcc, s[26:27]")
    A(f"v_cmp_ne_u32 s[26:27], s{sTAG}, v138"); A("s_or_b64 vcc, vcc, s[26:27]")
    A(f"v_cmp_ne_u32 s[26:27], s{sTAG}, v142"); A("s_or_b64 vcc, vcc, s[26:27]")
    A("s_cbranch_scc0 L_qgot")
    A(f"s_add_u32 s{sCNT}, s{sCNT}, 1"); A(f"s_cmp_lt_u32 s{sCNT}, {SPIN_MAX}"); A("s_cbranch_scc1 L_qpoll")
    A("s_branch L_end")
    LB("L_qgot")
    A("v_lshlrev_b32 v93, 3, v0")
    for j in range(4): A(f"ds_write_b64 v93, v[{128+4*j}:{129+4*j}] offset:{L_QL+512*j}")
    A("v_mov_b32 v94, 1")
    A("s_waitcnt lgkmcnt(0)")
    A("ds_write_b32 v92, v94")
    for j in range(1, 5): tile_loads(j, "K")
    stamp(3)
    A("s_setprio 0")
    LB("L_qready")
    stamp(4)
    C("---- read q operands")
    A("v_bfe_u32 v92, v0, 1, 1"); A("v_lshlrev_b32 v92, 9, v92"); A("v_lshl_add_u32 v92, v7, 4, v92")
    A("v_xor_b32 v93, 512, v92")
    for br, vq in ((1, vQB), (0, vQA)):
        for hf in range(2):
            A(f"ds_read_b128 v[{vq+4*hf}:{vq+4*hf+3}], v92 offset:{L_QL+1024*br+256*hf}")
            A(f"ds_read_b128 v[{vq+8+4*hf}:{vq+8+4*hf+3}], v93 offset:{L_QL+1024*br+256*hf}")
    for r in range(vAB, vAB+16): A(f"v_mov_b32 v{r}, 0")
    A("s_waitcnt lgkmcnt(0)")
    C("---- K phase")
    for j in range(5):
        vq = vQB if j == 0 else vQA
        A("s_waitcnt vmcnt(32)")
        base = vBUF + 32*j
        first = True
        for hf in range(2):
            for dw in range(4):
                for i in range(4):
                    k = base + (2*i+hf)*4 + dw
                    for acc, qo in ((vX, 0), (vY, 8)):
                        q = vq + qo + 4*hf + dw
                        if first: A(f"v_dot2_f32_bf16 v{acc+i}, v{k}, v{q}, 0")
                        else: A(f"v_dot2c_f32_bf16 v{acc+i}, v{k}, v{q}")
                first = False
        tile_loads(j, "V")
        s = vS + 4*j
        for i in range(4): A(f"v_add_f32_dpp v{s+i}, v{vY+i}, v{vX+i} quad_perm:[2,3,0,1] row_mask:0xf bank_mask:0xf")
        for pat in ("quad_perm:[1,0,3,2]", "row_ror:4", "row_ror:8"):
            for i in range(4): A(f"v_add_f32_dpp v{s+i}, v{s+i}, v{s+i} {pat} row_mask:0xf bank_mask:0xf")
    stamp(5)
    C("---- wo loads (waves 0..6); wave 7 loads in-range duplicates to keep vmcnt uniform is avoided by branch counts")
    A("v_mul_u32_u24 v92, 7168, v6"); A("v_lshl_add_u32 v92, v7, 3, v92")
    A(f"s_lshl_b32 s{sT0}, s{sCL}, 4"); A(f"s_add_u32 s{sT0}, s{sT0}, s{sI}"); A(f"s_mul_i32 s{sT0}, s{sT0}, {32*896}")
    A(f"s_min_u32 s{sT1}, s{sW}, 6"); A(f"s_lshl_b32 s{sT1}, s{sT1}, 7"); A(f"s_add_u32 s30, s{sT0}, s{sT1}"); A("s_add_u32 s31, s30, 3584")
    for k in range(8):
        A(f"buffer_load_dwordx2 v[{vWO+2*k}:{vWO+2*k+1}], v92, {srd(sWO)}, s{30 + k//4} offen offset:{(k%4)*896} nt")
    C("---- softmax (per wave)")
    def softmax(br, s0, n):
        m, t, lsum = 92, 93, 94
        regs = list(range(s0, s0+n))
        A(f"v_max3_f32 v{m}, v{regs[0]}, v{regs[1]}, v{regs[2]}")
        rest = regs[3:]
        while len(rest) >= 2:
            A(f"v_max3_f32 v{m}, v{m}, v{rest[0]}, v{rest[1]}"); rest = rest[2:]
        if rest: A(f"v_max_f32 v{m}, v{m}, v{rest[0]}")
        for sw in ("v_permlane16_swap_b32", "v_permlane32_swap_b32"):
            A(f"v_mov_b32 v{t}, v{m}"); A("s_nop 1"); A(f"{sw} v{m}, v{t}"); A("s_nop 1"); A(f"v_max_f32 v{m}, v{m}, v{t}")
        A(f"v_mul_f32 v{m}, s{sC}, v{m}")
        for r in regs: A(f"v_fma_f32 v{r}, v{r}, s{sC}, -v{m}")
        for r in regs: A(f"v_exp_f32 v{r}, v{r}")
        A("s_nop 0")
        A(f"v_add_f32 v{lsum}, v{regs[0]}, v{regs[1]}")
        for r in regs[2:]: A(f"v_add_f32 v{lsum}, v{lsum}, v{r}")
        for sw in ("v_permlane16_swap_b32", "v_permlane32_swap_b32"):
            A(f"v_mov_b32 v{t}, v{lsum}"); A("s_nop 1"); A(f"{sw} v{lsum}, v{t}"); A("s_nop 1"); A(f"v_add_f32 v{lsum}, v{lsum}, v{t}")
        for j in range(0, n, 4):
            A(f"v_cvt_pk_bf16_f32 v{s0+j}, v{s0+j}, v{s0+j+1}")
            A(f"v_cvt_pk_bf16_f32 v{s0+j+1}, v{s0+j+2}, v{s0+j+3}")
        A(f"v_mov_b32 v{t}, v{lsum}")
        A("v_bfe_u32 v95, v0, 1, 1"); A("v_lshlrev_b32 v95, 6, v95")
        A(f"s_lshl_b32 s{sT0}, s{sW}, 3"); A(f"v_add_u32 v95, s{sT0}, v95")
        A(f"ds_write_b64 v95, v[{m}:{t}] offset:{L_ML+128*br}")
    softmax(1, vS, 4)
    softmax(0, vS+4, 16)
    C("---- V phase")
    for j in range(5):
        p = vS + 4*j
        for t in range(8):
            A(f"v_cndmask_b32 v{vAT+2*t}, 0, v{p}, s[{sMSK+2*t}:{sMSK+2*t+1}]")
            A(f"v_cndmask_b32 v{vAT+2*t+1}, 0, v{p+1}, s[{sMSK+2*t}:{sMSK+2*t+1}]")
        A(f"s_waitcnt vmcnt({8 + 8*(4-j)})")
        if j == 4: stamp(6)
        base = vBUF + 32*j
        acc = vAB if j == 0 else vAA
        ops = []
        for e in range(8):
            for hf in range(2):
                dw = e // 2; sel = sHI if e & 1 else sLO
                n = len(ops); tr = vT + 2*(n % 4)
                r = lambda i: base + (2*i+hf)*4 + dw
                ops.append((f"v_perm_b32 v{tr}, v{r(1)}, v{r(0)}, s{sel}", f"v_perm_b32 v{tr+1}, v{r(3)}, v{r(2)}, s{sel}",
                            f"v_mfma_f32_16x16x16_bf16 v[{acc+4*hf}:{acc+4*hf+3}], v[{vAT+2*e}:{vAT+2*e+1}], v[{tr}:{tr+1}], v[{acc+4*hf}:{acc+4*hf+3}]"))
        A(ops[0][0]); A(ops[0][1])
        for n in range(16):
            if n + 1 < 16: A(ops[n+1][0]); A(ops[n+1][1])
            else: A("s_nop 1")
            A(ops[n][2])
    C("---- write O to LDS")
    A("v_lshlrev_b32 v92, 5, v7"); A("v_lshl_add_u32 v92, v6, 3, v92")
    A(f"s_lshl_b32 s{sT0}, s{sW}, 11"); A(f"v_add_u32 v92, s{sT0}, v92")
    for hf in range(2):
        for h in range(2):
            A(f"ds_write_b64 v92, v[{vAB+4*hf+2*h}:{vAB+4*hf+2*h+1}] offset:{L_O+16384+1024*h+512*hf}")
    A("s_nop 3")
    for hf in range(2):
        for h in range(2):
            A(f"ds_write_b64 v92, v[{vAA+4*hf+2*h}:{vAA+4*hf+2*h+1}] offset:{L_O+1024*h+512*hf}")
    C("tail address precompute")
    A(f"s_lshr_b32 s{sT0}, s{sW}, 2"); A(f"s_lshl_b32 s{sT0}, s{sT0}, 14")
    A(f"s_and_b32 s{sT1}, s{sW}, 3"); A(f"s_lshl_b32 s{sT1}, s{sT1}, 9"); A(f"s_add_u32 s{sT0}, s{sT0}, s{sT1}")
    A(f"v_lshlrev_b32 v93, 3, v0"); A(f"v_add_u32 v93, s{sT0}, v93")
    A(f"s_lshr_b32 s{sT0}, s{sW}, 1"); A(f"s_lshl_b32 s{sT0}, s{sT0}, 6"); A(f"v_mov_b32 v94, s{sT0}")
    A("v_lshlrev_b32 v2, 4, v7"); A("v_lshl_add_u32 v2, v6, 13, v2")
    A(f"s_lshl_b32 s4, s{sCL}, 18"); A(f"s_add_u32 s4, s4, {W_H1}")
    A(f"s_lshl_b32 s{sT0}, s{sIDX}, 13"); A(f"s_add_u32 s5, s4, s{sT0}")
    A(f"s_lshl_b32 s{sT0}, s{sW}, 15"); A(f"s_add_u32 s4, s4, s{sT0}")
    A(f"s_lshl_b32 s{sT0}, s{sIDX}, 8"); A(f"s_add_u32 s4, s4, s{sT0}")
    A("v_lshlrev_b32 v3, 4, v6"); A("v_lshl_add_u32 v3, v7, 8, v3")
    A(f"s_lshr_b32 s{sT0}, s{sW}, 2"); A(f"s_lshl_b32 s{sT0}, s{sT0}, 12"); A(f"s_add_u32 s5, s5, s{sT0}")
    A(f"s_and_b32 s{sT0}, s{sW}, 3"); A(f"s_lshl_b32 s{sT0}, s{sT0}, 6"); A(f"s_add_u32 s5, s5, s{sT0}")
    A("s_waitcnt lgkmcnt(0)")
    stamp(7)
    A("s_barrier")
    C("---- T1: combine waves, publish")
    for w in range(4): A(f"ds_read_b128 v[{128+4*w}:{131+4*w}], v94 offset:{L_ML+16*w}")
    for w in range(8): A(f"ds_read_b64 v[{144+2*w}:{145+2*w}], v93 offset:{L_O+2048*w}")
    A("s_waitcnt lgkmcnt(8)" if not stamps else "s_waitcnt lgkmcnt(0)")
    A("v_max3_f32 v162, v128, v130, v132"); A("v_max3_f32 v162, v162, v134, v136"); A("v_max3_f32 v162, v162, v138, v140"); A("v_max_f32 v162, v162, v142")
    for w in range(8): A(f"v_sub_f32 v{128+2*w}, v{128+2*w}, v162")
    for w in range(8): A(f"v_exp_f32 v{128+2*w}, v{128+2*w}")
    A("s_waitcnt lgkmcnt(0)")
    A("v_mul_f32 v164, v128, v129"); A("v_mul_f32 v160, v128, v144"); A("v_mul_f32 v161, v128, v145")
    for w in range(1, 8):
        A(f"v_fmac_f32 v164, v{128+2*w}, v{129+2*w}"); A(f"v_fmac_f32 v160, v{128+2*w}, v{144+2*w}"); A(f"v_fmac_f32 v161, v{128+2*w}, v{145+2*w}")
    A("v_rcp_f32 v165, v164"); A("v_log_f32 v166, v164")
    A(f"v_mov_b32 v163, s{sTAG}")
    A("v_mul_f32 v160, v160, v165"); A("v_mul_f32 v161, v161, v165"); A("v_add_f32 v162, v162, v166")
    A(f"buffer_store_dwordx4 v[160:163], v2, {srd(sWS)}, s4 offen sc1")
    stamp(8)
    C("wo transposition while waiting; T3 addresses")
    A(f"buffer_load_dwordx4 v[128:131], v3, {srd(sWS)}, s5 offen sc1")
    A("s_waitcnt vmcnt(2)")
    for e in range(4):
        sel = sHI if e & 1 else sLO
        for j in range(4):
            A(f"v_perm_b32 v{96+4*e+j}, v{vWO+2*(2*j+1)+e//2}, v{vWO+2*(2*j)+e//2}, s{sel}")
    A("v_and_b32 v92, 1, v7"); A("v_lshlrev_b32 v92, 6, v92"); A("v_lshl_add_u32 v92, v6, 4, v92"); A(f"v_add_u32 v92, {L_OB}, v92")
    A(f"v_mov_b32 v93, {L_ZERO}")
    for t in range(4):
        pat = (0b11 << (4*t)) * 0x00010001
        A(f"s_mov_b32 s26, {pat:#x}"); A(f"s_mov_b32 s27, {pat:#x}")
        A(f"v_cndmask_b32 v{112+t}, v93, v92, s[26:27]")
    A(f"s_lshl_b32 s{sT0}, s{sW}, 4"); A(f"v_lshlrev_b32 v94, 2, v6"); A(f"v_add_u32 v94, s{sT0}, v94")
    A("v_lshrrev_b32 v4, 2, v0"); A("v_and_b32 v5, 3, v0"); A("v_lshlrev_b32 v5, 4, v5"); A("v_lshl_add_u32 v4, v4, 13, v5")
    A(f"s_mul_i32 s6, s{sB}, {112*8192}"); A(f"s_lshl_b32 s{sT0}, s{sW}, 17"); A(f"s_add_u32 s6, s6, s{sT0}")
    A(f"s_lshl_b32 s{sT0}, s{sCL}, 4"); A(f"s_add_u32 s{sT0}, s{sT0}, s{sI}"); A(f"s_lshl_b32 s{sT0}, s{sT0}, 6")
    A(f"s_add_u32 s6, s6, s{sT0}"); A(f"s_add_u32 s6, s6, {W_H2}")
    A(f"s_mov_b32 s{sCNT}, 0")
    C("---- T2: poll hop-1 inbox")
    LB("L_h1poll")
    A("s_waitcnt vmcnt(0)")
    A(f"v_cmp_ne_u32 vcc, s{sTAG}, v131")
    A("s_cbranch_vccz L_h1got")
    A(f"buffer_load_dwordx4 v[128:131], v3, {srd(sWS)}, s5 offen sc1")
    A(f"s_add_u32 s{sCNT}, s{sCNT}, 1"); A(f"s_cmp_lt_u32 s{sCNT}, {SPIN_MAX}"); A("s_cbranch_scc1 L_h1poll")
    A("s_branch L_end")
    LB("L_h1got")
    stamp(9)
    DP = ("quad_perm:[1,0,3,2]", "quad_perm:[2,3,0,1]", "row_ror:4", "row_ror:8")
    A(f"v_max_f32_dpp v132, v130, v130 {DP[0]} row_mask:0xf bank_mask:0xf")
    for pat in DP[1:]:
        A("s_nop 1"); A(f"v_max_f32_dpp v132, v132, v132 {pat} row_mask:0xf bank_mask:0xf")
    A("v_sub_f32 v130, v130, v132"); A("v_exp_f32 v130, v130"); A("s_nop 0")
    A("v_mul_f32 v128, v128, v130"); A("v_mul_f32 v129, v129, v130")
    for pat in DP:
        for r in (130, 128, 129): A(f"v_add_f32_dpp v{r}, v{r}, v{r} {pat} row_mask:0xf bank_mask:0xf")
    A("v_rcp_f32 v130, v130"); A("s_nop 0")
    A("v_mul_f32 v128, v128, v130"); A("v_mul_f32 v129, v129, v130")
    A("v_cvt_pk_bf16_f32 v128, v128, v129")
    A(f"ds_write_b32 v94, v128 offset:{L_OB}")
    A("s_waitcnt lgkmcnt(0)")
    A("s_barrier")
    A(f"s_cmp_eq_u32 s{sW}, 7"); A("s_cbranch_scc1 L_final")
    C("---- T3: o-proj")
    for t in range(4): A(f"ds_read_b128 v[{128+4*t}:{131+4*t}], v{112+t}")
    for t in range(4):
        A(f"s_waitcnt lgkmcnt({3-t})" if not stamps else "s_waitcnt lgkmcnt(0)")
        A(f"v_mfma_f32_16x16x32_bf16 v[160:163], v[{128+4*t}:{131+4*t}], v[{96+4*t}:{99+4*t}], " + ("0" if t == 0 else "v[160:163]"))
    A("s_nop 7")
    A(f"v_mov_b32 v162, s{sTAG}"); A(f"v_mov_b32 v163, s{sTAG}")
    A(f"buffer_store_dwordx4 v[160:163], v4, {srd(sWS)}, s6 offen sc1")
    stamp(10)
    A("s_branch L_done")
    C("---- T4: final reduce (wave 7 of wg < 224)")
    LB("L_final")
    A("s_cmp_ge_u32 s2, 224"); A("s_cbranch_scc1 L_done")
    A("v_lshlrev_b32 v93, 4, v0")
    A("s_lshl_b32 s7, s2, 13"); A(f"s_add_u32 s7, s7, {W_H2}"); A("s_add_u32 s8, s7, 4096")
    A("s_cmp_ge_u32 s2, 112"); A("s_cselect_b32 s9, 112, 0"); A("s_cselect_b32 s10, 448, 0"); A("s_sub_u32 s9, s2, s9")
    A("s_lshr_b32 s11, s9, 4"); A("s_lshl_b32 s11, s11, 6"); A("s_add_u32 s10, s10, s11")
    A("s_and_b32 s11, s9, 3"); A("s_lshl_b32 s11, s11, 4"); A("s_add_u32 s10, s10, s11")
    A("s_lshr_b32 s11, s9, 2"); A("s_and_b32 s11, s11, 3"); A("s_add_u32 s10, s10, s11"); A("s_lshl_b32 s10, s10, 1")
    A("v_lshlrev_b32 v94, 3, v0")
    A(f"s_mov_b32 s{sCNT}, 0")
    LB("L_h2poll")
    for j in range(8): A(f"buffer_load_dwordx4 v[{128+4*j}:{131+4*j}], v93, {srd(sWS)}, s{7+j//4} offen offset:{1024*(j%4)} sc1")
    A("s_waitcnt vmcnt(0)")
    A(f"v_cmp_ne_u32 vcc, s{sTAG}, v130")
    for j in range(1, 8):
        A(f"v_cmp_ne_u32 s[26:27], s{sTAG}, v{130+4*j}"); A("s_or_b64 vcc, vcc, s[26:27]")
    A("s_cbranch_scc0 L_h2got")
    A(f"s_add_u32 s{sCNT}, s{sCNT}, 1"); A(f"s_cmp_lt_u32 s{sCNT}, {SPIN_MAX}"); A("s_cbranch_scc1 L_h2poll")
    A("s_branch L_end")
    LB("L_h2got")
    for st in (4, 2, 1):
        for j in range(st):
            A(f"v_add_f32 v{128+4*j}, v{128+4*j}, v{128+4*(j+st)}"); A(f"v_add_f32 v{129+4*j}, v{129+4*j}, v{129+4*(j+st)}")
    for pat in ("row_ror:4", "row_ror:8"):
        A("s_nop 0")
        for r in (128, 129): A(f"v_add_f32_dpp v{r}, v{r}, v{r} {pat} row_mask:0xf bank_mask:0xf")
    A("s_nop 1")
    A("v_permlane16_swap_b32 v128, v129")
    A("s_nop 1")
    A("v_add_f32 v128, v128, v129")
    A("v_mov_b32 v129, v128"); A("s_nop 1")
    A("v_permlane32_swap_b32 v128, v129")
    A("s_nop 1")
    A("v_add_f32 v128, v128, v129")
    A("v_cvt_pk_bf16_f32 v128, v128, v128")
    A("v_lshlrev_b32 v94, 3, v7"); A("v_mul_u32_u24 v95, 1792, v6"); A("v_add_u32 v94, v94, v95")
    A("s_mov_b64 exec, 0xf000f")
    A(f"buffer_store_short v128, v94, {srd(sOUT)}, s10 offen")
    A("s_cmp_lg_u32 s2, 0"); A("s_cbranch_scc1 L_noepoch")
    A("s_mov_b64 exec, 1")
    A(f"v_mov_b32 v129, s{sTAG}"); A(f"v_mov_b32 v94, {W_EPOCH}")
    A(f"buffer_store_dword v129, v94, {srd(sWS)}, 0 offen")
    LB("L_noepoch")
    A("s_mov_b64 exec, -1")
    stamp(10)
    LB("L_done")
    if stamps:
        A("s_waitcnt lgkmcnt(0)")
        A("s_lshl_b32 s4, s2, 3"); A(f"s_add_u32 s4, s4, s{sW}"); A("s_lshl_b32 s4, s4, 6"); A(f"s_add_u32 s4, s4, {STAMP_OFF}")
        for k in range(11): A(f"v_mov_b32 v{128+k}, s{80+2*k}")
        A("s_getreg_b32 s5, hwreg(HW_REG_XCC_ID)"); A("v_mov_b32 v139, s5")
        A("v_mov_b32 v94, 0"); A("s_mov_b64 exec, 1")
        for k in range(3): A(f"buffer_store_dwordx4 v[{128+4*k}:{131+4*k}], v94, {srd(sWS)}, s4 offen offset:{16*k}")
    LB("L_end")
    A("s_endpgm")
    L.append('.section .rodata,"a"'); L.append(".p2align 6"); L.append(f".amdhsa_kernel {KN}")
    for s in (".amdhsa_next_free_vgpr 256", ".amdhsa_next_free_sgpr 102", ".amdhsa_accum_offset 256", ".amdhsa_group_segment_fixed_size 0",
              ".amdhsa_kernarg_size 104", ".amdhsa_user_sgpr_count 2", ".amdhsa_user_sgpr_kernarg_segment_ptr 1", ".amdhsa_system_sgpr_workgroup_id_x 1"):
        L.append("  " + s)
    L.append(".end_amdhsa_kernel")
    return "\n".join(L) + "\n"

if __name__ == "__main__":
    sys.path.insert(0, "bench")
    import mk
    open("k1.s", "w").write(gen()); mk.build("k1.s")
    open("k1s.s", "w").write(gen(stamps=True)); mk.build("k1s.s")
    print("ok")
```
